```python
import torch

def _softmax(x, axis=-1):
    return torch.softmax(x, dim=axis)
def _gelu(x):
    return torch.nn.functional.gelu(x, approximate="tanh")
def _silu(x):
    return torch.nn.functional.silu(x)
def _sigmoid(x):
    return torch.sigmoid(x)
def _layernorm(x, axis=-1, eps=1e-5):
    m = x.mean(dim=axis, keepdim=True)
    v = x.var(dim=axis, keepdim=True, unbiased=False)
    return (x - m) / torch.sqrt(v + eps)
def _scatter_add(tgt, idx, src, axis=0):
    return tgt.clone().index_add_(axis, idx, src)
def _segment_sum(src, seg, n):
    out = torch.zeros((n,) + src.shape[1:], dtype=src.dtype)
    return out.index_add_(0, seg, src)
def _pad(x, pw):
    flat = tuple(v for pair in reversed(pw) for v in pair)
    return torch.nn.functional.pad(x, flat)

kernel_name = 'recurrent_scan__grouped_kv_mqa__glu_gated_reglu__prompt'

def setup_inputs():

    _w = (lambda a: (lambda t: t.to(torch.bfloat16) if t.is_floating_point() else t)(torch.as_tensor(a)))
    def _A_setup():
        B, S, D, H = 1, 2048, 512, 32
        Dh = D // H
        return {
            "x": _w((lambda *s: torch.randn(*s, dtype=torch.bfloat16) * 0.05)(B, S, D)),
            "wq": _w((lambda *s: torch.randn(*s, dtype=torch.bfloat16) * 0.2)(D, H * Dh)),
            "wk": _w((lambda *s: torch.randn(*s, dtype=torch.bfloat16) * 0.2)(D, Dh)),
            "wv": _w((lambda *s: torch.randn(*s, dtype=torch.bfloat16) * 0.2)(D, Dh)),
            "wo": _w((lambda *s: torch.randn(*s, dtype=torch.bfloat16) * 0.2)(H * Dh, D)),
        }
    _A_in = _A_setup()

    def _B_setup():
        B, S, D, F = 1, 2048, 512, 1792
        return {
            "x": _w((lambda *s: torch.randn(*s, dtype=torch.bfloat16) * 0.05)(B, S, D)),
            "W_gate": _w((lambda *s: torch.randn(*s, dtype=torch.bfloat16) * 0.1)(D, F) * (2.0 / D) ** 0.5),
            "W_up": _w((lambda *s: torch.randn(*s, dtype=torch.bfloat16) * 0.1)(D, F) * (2.0 / D) ** 0.5),
            "W_down": _w((lambda *s: torch.randn(*s, dtype=torch.bfloat16) * 0.1)(F, D) * (1.0 / F) ** 0.5),
        }
    _B_in = _B_setup()

    return {
        "A_x": _A_in["x"],
        "A_wq": _A_in["wq"],
        "A_wk": _A_in["wk"],
        "A_wv": _A_in["wv"],
        "A_wo": _A_in["wo"],
        "B_x": _B_in["x"],
        "B_W_gate": _B_in["W_gate"],
        "B_W_up": _B_in["W_up"],
        "B_W_down": _B_in["W_down"],
    }

def reference(A_x, A_wq, A_wk, A_wv, A_wo, B_x, B_W_gate, B_W_up, B_W_down):
    def _A_ref(x, wq, wk, wv, wo):
        B, S, D = x.shape
        H = 32
        Dh = D // H
        q = (lambda x, *d: x.permute(*d))((x @ wq).reshape(B, S, H, Dh), 0, 2, 1, 3)
        k = x @ wk
        v = x @ wv
        scores = torch.einsum("bhqd,bkd->bhqk", q, k) * (Dh ** -0.5)
        p = _softmax(scores, axis=-1)
        o = torch.einsum("bhqk,bkd->bhqd", p, v)
        return (lambda x, *d: x.permute(*d))(o, 0, 2, 1, 3).reshape(B, S, H * Dh) @ wo

    def _B_ref(x, W_gate, W_up, W_down):
        gate = torch.einsum("bsd,df->bsf", x, W_gate)
        up = torch.einsum("bsd,df->bsf", x, W_up)
        gate = gate * (lambda x, dt: x.to(dt))(gate > 0, gate.dtype)
        h = gate * up
        return torch.einsum("bsf,fd->bsd", h, W_down)

    x = A_x
    xn = _layernorm(x, axis=-1)
    s = _A_ref(xn, A_wq, A_wk, A_wv, A_wo)
    g = _silu(_B_ref(xn, B_W_gate, B_W_up, B_W_down))
    return x + s * g
```

```python
import re

REG_RE = re.compile(r'^(-|abs\()?([vsa])(\d+)\)?$')
RNG_RE = re.compile(r'^(-|abs\()?([vsa])\[(\d+):(\d+)\]\)?$')

def regs_of(tok):
    tok = tok.strip()
    m = REG_RE.match(tok)
    if m:
        return [(m.group(2), int(m.group(3)))]
    m = RNG_RE.match(tok)
    if m:
        return [(m.group(2), i) for i in range(int(m.group(3)), int(m.group(4)) + 1)]
    if tok == 'vcc':
        return [('s', 106), ('s', 107)]
    if tok == 'vcc_lo': return [('s', 106)]
    if tok == 'vcc_hi': return [('s', 107)]
    if tok == 'exec':
        return [('s', 126), ('s', 127)]
    if tok == 'm0':
        return [('s', 124)]
    return []

TRANS = ('v_exp_f32', 'v_log_f32', 'v_rcp_f32', 'v_rsq_f32', 'v_sqrt_f32', 'v_sin_f32', 'v_cos_f32')

class Ins:
    __slots__ = ('text', 'op', 'ops', 'mods', 'wr', 'rd', 'kind', 'passes', 'srcc', 'srcab', 'nstates', 'wide_data')
    def __init__(self, text):
        self.text = text
        t = text.split(';')[0].strip()
        parts = t.split(None, 1)
        self.op = parts[0]
        rest = parts[1] if len(parts) > 1 else ''
        ops = []; cur = ''; depth = 0
        for ch in rest:
            if ch in '[(': depth += 1
            if ch in '])': depth -= 1
            if ch == ',' and depth == 0:
                ops.append(cur.strip()); cur = ''
            else:
                cur += ch
        if cur.strip(): ops.append(cur.strip())
        mods = ''
        if ops:
            sp = ops[-1].split(None, 1)
            ops[-1] = sp[0]
            if len(sp) > 1: mods = sp[1]
        self.ops = ops; self.mods = mods
        self.wr = []; self.rd = []; self.passes = 0; self.srcc = []; self.srcab = []; self.wide_data = []
        self.nstates = 1
        op = self.op
        R = regs_of
        if op == 's_nop':
            self.kind = 'nop'; self.nstates = int(ops[0], 0) + 1
        elif op in ('s_waitcnt', 's_barrier', 's_endpgm', 's_setprio', 's_sleep', 's_branch') or op.startswith('s_cbranch'):
            self.kind = 'sctl'
            if 'vcc' in op: self.rd = R('vcc')
        elif op.startswith('s_load') or op.startswith('s_memtime') or op.startswith('s_memreal'):
            self.kind = 'smem'; self.wr = R(ops[0]);
            for o in ops[1:]: self.rd += R(o)
        elif op.startswith('s_cmp') or op.startswith('s_bitcmp'):
            self.kind = 'salu'
            for o in ops: self.rd += R(o)
        elif op.startswith('s_setpc'):
            self.kind = 'sctl'; self.rd = R(ops[0])
        elif op.startswith('s_'):
            self.kind = 'salu'; self.wr = R(ops[0])
            for o in ops[1:]: self.rd += R(o)
            if 'saveexec' in op: self.wr += R('exec'); self.rd += R('exec')
            if op in ('s_addk_i32', 's_mulk_i32'): self.rd += R(ops[0])
        elif op.startswith('v_mfma'):
            self.kind = 'mfma'
            self.wr = R(ops[0]); self.srcab = R(ops[1]) + R(ops[2]); self.srcc = R(ops[3])
            self.rd = self.srcab + self.srcc
            self.passes = 8 if '32x32' in op else 4
        elif op.startswith('v_cmp'):
            self.kind = 'valu'; self.wr = R(ops[0])
            for o in ops[1:]: self.rd += R(o)
        elif op.startswith('v_permlane'):
            self.kind = 'valu'; self.wr = R(ops[0]) + R(ops[1]); self.rd = R(ops[0]) + R(ops[1])
        elif op.startswith('v_'):
            self.kind = 'valu'; self.wr = R(ops[0])
            srcs = ops[1:]
            if op.startswith('v_add_co') or op.startswith('v_addc_co') or op.startswith('v_sub_co'):
                self.wr += R(ops[1]); srcs = ops[2:]
            for o in srcs: self.rd += R(o)
            if op.startswith('v_fmac') or op.startswith('v_dot2c') or 'UNUSED_PRESERVE' in mods or op.startswith('v_writelane') or '_dpp' in op:
                self.rd += R(ops[0])
        elif op.startswith('ds_'):
            self.kind = 'ds'
            if op.startswith('ds_read') or '_rtn' in op or 'permute' in op or 'swizzle' in op:
                self.wr = R(ops[0])
                for o in ops[1:]: self.rd += R(o)
            else:
                for o in ops: self.rd += R(o)
        elif op.startswith('buffer_') or op.startswith('global_'):
            self.kind = 'vmem'
            if op in ('buffer_inv', 'buffer_wbl2'):
                pass
            elif 'load' in op:
                if re.search(r'\blds\b', mods) or '_lds_' in op:
                    for o in ops: self.rd += R(o)
                    self.rd += R('m0')
                else:
                    self.wr = R(ops[0])
                    for o in ops[1:]: self.rd += R(o)
            elif 'atomic' in op:
                for o in ops: self.rd += R(o)
                if 'sc0' in mods: self.wr = R(ops[0])
            else:
                for o in ops: self.rd += R(o)
                if 'x4' in op or 'x3' in op:
                    self.wide_data = R(ops[0]) if op.startswith('buffer_') else R(ops[1])
        else:
            raise ValueError('unknown instruction: ' + text)

def is_ins(line):
    t = line.split(';')[0].strip()
    return bool(t) and not t.endswith(':') and not t.startswith('.')

def need_states(p, c):
    n = 0
    pw = set(p.wr);
    crd = set(c.rd); cwr = set(c.wr)
    pv = {r for r in pw if r[0] in 'va'}
    ps = {r for r in pw if r[0] == 's'}
    if p.kind == 'valu':
        if c.kind == 'mfma' and pv & crd: n = max(n, 2)
        if p.op in TRANS and c.kind in ('valu',) and pv & crd and c.op not in TRANS: n = max(n, 1)
        if p.op in TRANS and c.kind in ('valu',) and pv & crd: n = max(n, 1)
        if c.op.startswith('v_readlane') or c.op.startswith('v_readfirstlane'):
            if pv & crd: n = max(n, 1)
        if ('_dpp' in c.op) and pv & crd: n = max(n, 2)
        if c.op.startswith('v_permlane') and pv & crd: n = max(n, 2)
        if ps & crd:
            if c.kind in ('valu', 'mfma'): n = max(n, 2)
            if c.kind == 'vmem': n = max(n, 5)
            if c.op.startswith('v_readlane') or c.op.startswith('v_writelane'): n = max(n, 4)
            if c.kind in ('salu', 'sctl', 'smem'): n = max(n, 1)
        if ('_sdwa' in p.op or 'op_sel:' in p.mods) and c.kind == 'valu' and pv & (crd | cwr): n = max(n, 1)
        if p.op.startswith('v_dot'):
            if pv & (crd | cwr):
                if not (c.op == p.op and not (pv & set(sum((regs_of(o) for o in c.ops[1:3]), [])))):
                    n = max(n, 3)
        if ('s', 126) in ps:
            n = max(n, 5) if c.kind in ('valu', 'mfma') else n
    if p.kind == 'salu' and ('s', 124) in ps and ('s', 124) in crd and c.kind == 'vmem': n = max(n, 1)
    if p.kind == 'mfma':
        big = 12 if p.passes == 8 else 8
        if c.kind == 'mfma':
            if pv & set(c.srcab): n = max(n, big)
            if pv & set(c.srcc):
                if not (list(p.wr) == list(c.srcc) and p.passes == c.passes): n = max(n, p.passes + 2)
            elif pv & cwr:
                if p.passes != c.passes: n = max(n, p.passes + 2)
        elif c.kind in ('valu', 'vmem', 'ds'):
            if pv & (crd | cwr): n = max(n, big)
        if c.kind == 'valu' and set(p.srcc) & cwr: n = max(n, p.passes - 1)
    if p.wide_data:
        if set(p.wide_data) & cwr:
            n = max(n, 2 if c.kind in ('valu', 'mfma') else 1)
    return n

MAXD = 20

def fix_hazards(lines, insert=True, tag=''):
    out = []; hist = []
    ninserted = 0
    for ln in lines:
        if not is_ins(ln):
            out.append(ln); continue
        c = Ins(ln.strip())
        need = 0; dist = 0
        for p in reversed(hist):
            n = need_states(p, c)
            if n > dist: need = max(need, n - dist)
            dist += p.nstates
            if dist > MAXD: break
        if need > 0:
            if not insert:
                raise RuntimeError(f'hazard ({tag}): need {need} more states before: {ln}')
            k = need
            while k > 0:
                m = min(k, 16)
                nop = f'    s_nop {m-1}    ; auto'
                out.append(nop); hist.append(Ins(f's_nop {m-1}')); k -= m
            ninserted += 1
        out.append(ln); hist.append(c)
        if len(hist) > 40: hist = hist[-40:]
    return out, ninserted

WC_RE = re.compile(r'(vmcnt|lgkmcnt)\((\d+)\)')

def check_waits(lines, tag=''):
    vm = []; lg = []
    errs = []
    for ln in lines:
        if not is_ins(ln): continue
        c = Ins(ln.strip())
        if c.op == 's_waitcnt':
            for which, n in WC_RE.findall(c.text):
                n = int(n)
                if which == 'vmcnt':
                    if len(vm) > n: vm = vm[len(vm) - n:] if n > 0 else []
                else:
                    if any(k == 'smem' for _, _, k in lg):
                        if n == 0: lg = []
                    elif len(lg) > n: lg = lg[len(lg) - n:] if n > 0 else []
            continue
        touched = set(c.rd) | set(c.wr)
        for regs, txt, _ in vm + lg:
            if regs & touched:
                errs.append(f'[{tag}] "{c.text}" touches regs pending from "{txt}"')
        if c.kind == 'vmem': vm.append((set(c.wr), c.text, 'vm'))
        elif c.kind == 'ds': lg.append((set(c.wr), c.text, 'ds'))
        elif c.kind == 'smem': lg.append((set(c.wr), c.text, 'smem'))
        if len(vm) > 63: errs.append(f'[{tag}] vmcnt overflow at {c.text}')
    return errs

class Asm:
    def __init__(self):
        self.lines = []
    def __call__(self, s):
        for l in s.strip('\n').split('\n'):
            l = l.strip()
            if not l: continue
            if l.endswith(':') or l.startswith('.'):
                self.lines.append(l)
            else:
                self.lines.append('    ' + l)
    def label(self, n): self.lines.append(n + ':')
    def extend(self, other): self.lines += other.lines if isinstance(other, Asm) else other

def vr(b, n=1):
    return f'v{b}' if n == 1 else f'v[{b}:{b+n-1}]'
def sr(b, n=1):
    return f's{b}' if n == 1 else f's[{b}:{b+n-1}]'
```

```python
import sys, importlib
sys.path.insert(0, 'gen')
from asmlib import *

NAME = 'recurrent_scan__grouped_kv_mqa__glu_gated_reglu__prompt'
HEADER = open(f'cdna_kernels/{NAME}.s.ref').read().split('; Override launch')[0]

def assemble(kernels, path):
    out = [HEADER.rstrip('\n')]
    for n, a, info in kernels:
        out.append(f"; @launch kernel={n} grid=({info['grid']},1,1) block=({info['block']},1,1) lds={info['lds']}")
    out.append('.amdgcn_target "amdgcn-amd-amdhsa--gfx950"')
    out.append('.text')
    for n, a, info in kernels:
        lines, k = fix_hazards(a.lines, tag=n)
        print(f'{n}: {sum(map(is_ins, lines))} instrs, {k} auto nops')
        out += [f'.globl {n}', '.p2align 8', f'.type {n},@function', f'{n}:'] + lines
    out.append('.section .rodata,"a"')
    for n, a, info in kernels:
        v = info['vgpr']
        acc = info.get('accum', (v + 3) // 4 * 4)
        out += ['.p2align 6', f'.amdhsa_kernel {n}',
                f'  .amdhsa_next_free_vgpr {v}',
                f"  .amdhsa_next_free_sgpr {info['sgpr']}",
                f'  .amdhsa_accum_offset {acc}',
                '  .amdhsa_group_segment_fixed_size 0',
                '  .amdhsa_kernarg_size 96',
                '  .amdhsa_user_sgpr_count 2',
                '  .amdhsa_user_sgpr_kernarg_segment_ptr 1',
                '  .amdhsa_system_sgpr_workgroup_id_x 1',
                '.end_amdhsa_kernel']
    open(path, 'w').write('\n'.join(out) + '\n')

if __name__ == '__main__':
    import k1
    ks = []
    a, info = k1.gen_k1('k1_kernel'); ks.append(('k1_kernel', a, info))
    for e in check_waits(a.lines, 'k1'): print(e)
    assemble(ks, sys.argv[1] if len(sys.argv) > 1 else 'out.s')
```

```python
from asmlib import *
from layout import *
MF = "v_mfma_f32_32x32x16_bf16"

class KS:
    def __init__(s, a, n, DB, acc, breg, fa, fb, v_src, v_tr, v_l16, srd_w, srd_b, s_w, s_b, bstride, s_ring, s_t, bflags=''):
        s.__dict__.update(locals()); s.q = []
    def dma(s, k):
        for p in range(2):
            s.a(f"s_add_u32 m0, s{s.s_ring}, {(k % s.DB) * 2048 + p * 1024}")
            s.a(f"s_add_u32 s{s.s_t}, s{s.s_w}, {(k * 16 + p * 8) * 1024}")
            s.a(f"buffer_load_dwordx4 v{s.v_src}, s[{s.srd_w}:{s.srd_w+3}], s{s.s_t} offen lds")
            s.q.append(('D', k))
    def ldb(s, k):
        for rt in range(2):
            s.a(f"s_add_u32 s{s.s_t}, s{s.s_b}, {rt * s.bstride + k * 1024}")
            s.a(f"buffer_load_dwordx4 {vr(s.breg + 8 * (k % s.DB) + 4 * rt, 4)}, v{s.v_l16}, s[{s.srd_b}:{s.srd_b+3}], s{s.s_t} offen {s.bflags}")
            s.q.append(('B', k))
    def other(s, n=1):
        s.q += [('X', -1)] * n
    def wait(s, need):
        last = max(i for i, t in enumerate(s.q) if t in need)
        s.a(f"s_waitcnt vmcnt({len(s.q) - 1 - last})")
    def reads(s, k):
        F = s.fa if k % 2 == 0 else s.fb
        for dt in range(2):
            for jh in range(2):
                s.a(f"ds_read_b64_tr_b16 {vr(F + 4 * dt + 2 * jh, 2)}, v{s.v_tr + dt} offset:{(k % s.DB) * 2048 + jh * 1024}")
    def mf(s, k):
        F = s.fa if k % 2 == 0 else s.fb
        for dt in range(2):
            for rt in range(2):
                d = s.acc + 16 * (dt * 2 + rt)
                s.a(f"{MF} {vr(d,16)}, {vr(F + 4 * dt, 4)}, {vr(s.breg + 8 * (k % s.DB) + 4 * rt, 4)}, {'0' if k == 0 else vr(d,16)}")
    def loop(s, hook=None):
        n, DB = s.n, s.DB
        s.wait([('D', 0)])
        s.reads(0)
        s.a("s_waitcnt lgkmcnt(0)")
        if DB < n: s.dma(DB)
        for k in range(n):
            need = [('B', k)] + ([('D', k + 1)] if k + 1 < n else [])
            s.wait(need)
            if k + 1 < n: s.reads(k + 1)
            s.mf(k)
            if k + DB < n: s.ldb(k + DB)
            if k + 1 < n:
                s.a("s_waitcnt lgkmcnt(0)")
                if k + 1 + DB < n: s.dma(k + 1 + DB)
            if hook: hook(k)

def ks_addr(a, lane, v_src, v_tr, s_ring, t):
    a(f"""
    v_lshrrev_b32 v{t}, 3, v{lane}          ; row 0..7
    v_and_b32 v{t+1}, 2, v{t}
    v_lshlrev_b32 v{t+1}, 1, v{t+1}
    v_and_b32 v{t+2}, 7, v{lane}
    v_xor_b32 v{t+1}, v{t+1}, v{t+2}
    v_lshlrev_b32 v{t+1}, 4, v{t+1}
    v_lshl_add_u32 v{v_src}, v{t}, 10, v{t+1}
    v_lshrrev_b32 v{t}, 5, v{lane}          ; h
    v_bfe_u32 v{t+1}, v{lane}, 2, 2         ; r4
    v_lshl_add_u32 v{t}, v{t}, 2, v{t+1}    ; 4h + r4
    v_lshlrev_b32 v{t}, 7, v{t}
    v_bfe_u32 v{t+2}, v{lane}, 4, 1         ; mh
    v_lshl_add_u32 v{t}, v{t+2}, 5, v{t}
    v_and_b32 v{t+2}, 3, v{lane}            ; c4
    v_lshl_add_u32 v{t}, v{t+2}, 3, v{t}
    v_add_u32 v{t}, s{s_ring}, v{t}
    v_lshrrev_b32 v{t+1}, 1, v{t+1}
    v_lshlrev_b32 v{t+1}, 6, v{t+1}
    v_add_u32 v{v_tr}, v{t}, v{t+1}
    v_xor_b32 v{t+1}, 64, v{t+1}
    v_add_u32 v{v_tr+1}, v{t}, v{t+1}
    """)

def ks_write_partial(a, lane, acc, s_base, t):
    a(f"""
    v_and_b32 v{t+4}, 31, v{lane}
    v_lshlrev_b32 v{t+4}, 8, v{t+4}
    v_add_u32 v{t+4}, s{s_base}, v{t+4}
    v_lshrrev_b32 v{t+5}, 5, v{lane}        ; h
    v_xor_b32 v{t+5}, v{t+5}, v{lane}
    v_and_b32 v{t+5}, 7, v{t+5}             ; h ^ (lane&7)
    """)
    for g in range(4):
        a(f"v_xor_b32 v{t+g}, {2*g}, v{t+5}")
        a(f"v_lshl_add_u32 v{t+g}, v{t+g}, 4, v{t+4}")
    for dt in range(2):
        for rt in range(2):
            for g in range(4):
                a(f"ds_write_b128 v{t+g}, {vr(acc + 16*(dt*2+rt) + 4*g, 4)} offset:{dt*128 + rt*8192}")

def ks_reduce_addr(a, lane, s_fw, base, t, s_t):
    a(f"""
    s_lshl_b32 s{s_t}, s{s_fw}, 12
    s_add_u32 s{s_t}, s{s_t}, {base}
    v_lshrrev_b32 v{t+4}, 2, v{lane}
    v_and_b32 v{t+5}, 3, v{lane}
    v_lshlrev_b32 v{t+5}, 2, v{t+5}         ; 4qd
    v_and_b32 v{t}, 7, v{t+4}
    v_xor_b32 v{t+5}, v{t+5}, v{t}
    v_lshlrev_b32 v{t+4}, 8, v{t+4}
    v_add_u32 v{t+4}, s{s_t}, v{t+4}
    """)
    for i in range(4):
        a(f"v_xor_b32 v{t+i}, {i}, v{t+5}")
        a(f"v_lshl_add_u32 v{t+i}, v{t+i}, 4, v{t+4}")

def ks_reduce(a, t, dst):
    for p in range(4):
        for i in range(4):
            if p == 3 and i == 0: a("s_waitcnt lgkmcnt(8)")
            a(f"ds_read_b128 {vr(dst + 16*p + 4*i, 4)}, v{t+i} offset:{p*16384}")
    a("s_waitcnt lgkmcnt(8)")
    for i in range(8): a(f"v_pk_add_f32 {vr(dst+2*i,2)}, {vr(dst+2*i,2)}, {vr(dst+16+2*i,2)}")
    a("s_waitcnt lgkmcnt(0)")
    for i in range(8): a(f"v_pk_add_f32 {vr(dst+32+2*i,2)}, {vr(dst+32+2*i,2)}, {vr(dst+48+2*i,2)}")
    for i in range(8): a(f"v_pk_add_f32 {vr(dst+2*i,2)}, {vr(dst+2*i,2)}, {vr(dst+32+2*i,2)}")
```

```python
from asmlib import *
from layout import *
import struct

def f32bits(x): return struct.unpack('<I', struct.pack('<f', x))[0]

def srd(a, d, base, size):
    a(f"""
    s_mov_b32 s{d}, s{base}
    s_and_b32 s{d+1}, s{base+1}, 0xffff
    s_mov_b32 s{d+2}, {size}
    s_mov_b32 s{d+3}, 0x20000
    """)

import os
PF = int(os.environ.get('PF', '1'))
K1_LDS = 144 * KB
L_XN, L_W, L_KV = 0, 64 * KB, 128 * KB

def gen_k1(name):
    a = Asm()
    a(f"""
    s_cmp_ge_u32 s2, 256
    s_cbranch_scc1 {name}_end
    s_load_dwordx8 s[4:11], s[0:1], 0
    s_load_dwordx2 s[12:13], s[0:1], 88
    v_lshrrev_b32 v1, 6, v0
    v_and_b32 v2, 63, v0                 ; lane
    v_readfirstlane_b32 s32, v1
    s_and_b32 s33, s2, 7
    s_lshl_b32 s33, s33, 2
    s_lshr_b32 s35, s2, 6
    s_add_u32 s33, s33, s35              ; rb = (id%8)*4 + id/64
    s_bfe_u32 s34, s2, 0x30003           ; c = (id>>3)&7
    v_lshrrev_b32 v3, 3, v2              ; lane/8
    v_and_b32 v4, 7, v2                  ; lane%8
    v_lshlrev_b32 v5, 10, v3
    v_lshl_add_u32 v6, v4, 4, v5         ; x voffset (row lane/8, chunk lane%8)
    ; W source chunk = (lane%8) ^ (4*((lane/8>>1)&1))
    v_and_b32 v7, 2, v3
    v_lshlrev_b32 v7, 1, v7
    v_xor_b32 v7, v7, v4
    v_lshl_add_u32 v7, v7, 4, v5         ; W voffset
    s_lshl_b32 s36, s33, 16              ; rb*65536
    s_lshl_b32 s37, s32, 13
    s_add_u32 s36, s36, s37
    s_waitcnt lgkmcnt(0)
    """)
    srd(a, 16, 4, 2048 * 512 * 2)
    srd(a, 20, 6, 512 * 512 * 2)
    for i in range(8):
        a(f"buffer_load_dwordx4 {vr(8+4*i,4)}, v6, s[16:19], s36 offen offset:{128*i}")
    a(f"""
    s_lshl_b32 s38, s34, 7               ; c*128
    s_add_u32 s38, s38, s37              ; + w*8192
    s_lshl_b32 s39, s32, 10
    s_add_u32 s39, s39, {L_W}
    """)
    for i in range(8):
        a(f"""
        s_mov_b32 m0, s39
        s_add_u32 s39, s39, 8192
        buffer_load_dwordx4 v7, s[20:23], s38 offen lds
        s_add_u32 s38, s38, 65536
        """)
    srd(a, 28, 12, WS_END)
    a(f"""
    s_cmp_ge_u32 s34, 4
    s_cbranch_scc1 {name}_nokv
    s_cmp_ge_u32 s34, 2
    s_cselect_b32 s24, s10, s8
    s_cselect_b32 s25, s11, s9
    s_and_b32 s25, s25, 0xffff
    s_mov_b32 s26, {512*16*2}
    s_mov_b32 s27, 0x20000
    v_lshlrev_b32 v40, 4, v2
    s_lshl_b32 s38, s32, 11
    s_add_u32 s39, s38, {L_KV}
    s_mov_b32 m0, s39
    s_nop 0
    buffer_load_dwordx4 v40, s[24:27], s38 offen lds
    buffer_load_dwordx4 v40, s[24:27], s38 offen offset:1024 lds
    s_waitcnt vmcnt(10)
    s_branch {name}_ln
    {name}_nokv:
    s_waitcnt vmcnt(8)
    {name}_ln:
    """)
    a(f"""
    v_mov_b32 v40, 0
    v_mov_b32 v41, 0
    v_mov_b32 v42, 0
    v_mov_b32 v43, 0
    v_mov_b32 v44, 0x3f803f80
    """)
    for i in range(32):
        a(f"v_dot2c_f32_bf16 v{40+(i%2)}, v{8+i}, v44")
        a(f"v_dot2c_f32_bf16 v{42+(i%2)}, v{8+i}, v{8+i}")
    a(f"""
    v_add_f32 v40, v40, v41
    v_add_f32 v42, v42, v43
    ; LDS write address (computed here to fill wait states)
    v_and_b32 v45, 1, v2                 ; h = lane%2
    v_lshlrev_b32 v45, 5, v45
    v_add_f32_dpp v40, v40, v40 quad_perm:[1,0,3,2] row_mask:0xf bank_mask:0xf
    v_add_f32_dpp v42, v42, v42 quad_perm:[1,0,3,2] row_mask:0xf bank_mask:0xf
    s_and_b32 s38, s32, 3
    s_lshl_b32 s38, s38, 3               ; (w%4)*8
    v_add3_u32 v45, v45, v3, s38         ; h*32 + r%32
    v_add_f32_dpp v40, v40, v40 quad_perm:[2,3,0,1] row_mask:0xf bank_mask:0xf
    v_add_f32_dpp v42, v42, v42 quad_perm:[2,3,0,1] row_mask:0xf bank_mask:0xf
    v_xor_b32 v45, v45, v4               ; slot
    v_lshlrev_b32 v45, 4, v45
    v_add_f32_dpp v40, v40, v40 row_half_mirror row_mask:0xf bank_mask:0xf
    v_add_f32_dpp v42, v42, v42 row_half_mirror row_mask:0xf bank_mask:0xf
    v_lshrrev_b32 v46, 1, v4             ; (lane%8)/2
    v_lshl_add_u32 v45, v46, 10, v45
    s_lshr_b32 s38, s32, 2
    s_lshl_b32 s38, s38, 15              ; rt*32768
    v_add_u32 v45, s38, v45              ; lds write addr
    v_mul_f32 v40, {1.0/512}, v40        ; mean
    v_mul_f32 v42, {1.0/512}, v42        ; E[x^2]
    v_fma_f32 v42, -v40, v40, v42        ; var
    v_max_f32 v42, 0, v42
    v_add_f32 v42, {hex(f32bits(1e-5))}, v42
    v_rsq_f32 v42, v42
    s_nop 0
    v_mul_f32 v40, v40, v42
    v_sub_f32 v40, 0, v40                ; -mean*rstd
    """.replace(f"{1.0/512}", hex(f32bits(1.0/512))))
    for i in range(8):
        for j in range(4):
            r = 8 + 4 * i + j
            t = 48 + 2 * (j % 2)
            a(f"""
            v_lshlrev_b32 v{t}, 16, v{r}
            v_and_b32 v{t+1}, 0xffff0000, v{r}
            v_fma_f32 v{t}, v{t}, v42, v40
            v_fma_f32 v{t+1}, v{t+1}, v42, v40
            v_cvt_pk_bf16_f32 v{r}, v{t}, v{t+1}
            """)
        a(f"ds_write_b128 v45, {vr(8+4*i,4)} offset:{4096*i}")
    a(f"""
    v_lshrrev_b32 v46, 5, v2             ; h = lane/32
    """)
    for q in range(4):
        a(f"""
        v_add_u32 v47, {2*q}, v46
        v_xor_b32 v47, v47, v2
        v_lshlrev_b32 v47, 4, v47
        v_add_u32 v{52+q}, {q*1024}, v47
        """)
    a(f"""
    v_bfe_u32 v47, v2, 2, 2              ; r4
    v_and_b32 v48, 3, v2                 ; c4
    v_bfe_u32 v49, v2, 4, 1              ; mh
    v_lshl_add_u32 v50, v46, 3, v47      ; 8h + r4
    s_waitcnt vmcnt(0) lgkmcnt(0)
    s_barrier
    s_cmp_ge_u32 s32, 4
    s_cbranch_scc1 {name}_aux
    ; ---- Q waves: rt = w%2, ct = w/2
    s_and_b32 s38, s32, 1
    s_lshr_b32 s39, s32, 1
    s_lshl_b32 s40, s38, 15
    v_add_u32 v52, s40, v52
    v_add_u32 v53, s40, v53
    v_add_u32 v54, s40, v54
    v_add_u32 v55, s40, v55
    v_lshrrev_b32 v51, 1, v47            ; (r4>>1)&1
    v_xor_b32 v51, s39, v51
    v_lshlrev_b32 v51, 6, v51
    v_lshl_add_u32 v51, v50, 7, v51
    v_lshl_add_u32 v51, v49, 5, v51
    v_lshl_add_u32 v51, v48, 3, v51
    v_add_u32 v51, {L_W}, v51
    """)
    ND = 4
    def rd(ks, waddr, wstep, wjh):
        s = ks % ND
        a(f"ds_read_b64_tr_b16 {vr(64+8*s,2)}, v{waddr} offset:{ks*wstep}")
        a(f"ds_read_b64_tr_b16 {vr(66+8*s,2)}, v{waddr} offset:{ks*wstep+wjh}")
        a(f"ds_read_b128 {vr(68+8*s,4)}, v{52+ks%4} offset:{(ks//4)*4096}")
    def kloop(waddr, wstep, wjh, swap):
        for ks in range(ND - 1): rd(ks, waddr, wstep, wjh)
        for ks in range(32):
            if ks + ND - 1 < 32:
                rd(ks + ND - 1, waddr, wstep, wjh)
                a(f"s_waitcnt lgkmcnt({3*(ND-1)})")
            else:
                a(f"s_waitcnt lgkmcnt({3*(31-ks)})")
            s = ks % ND
            A, B = vr(64+8*s, 4), vr(68+8*s, 4)
            if swap: A, B = B, A
            a(f"v_mfma_f32_32x32x16_bf16 v[8:23], {A}, {B}, {'0' if ks == 0 else 'v[8:23]'}")
    kloop(51, 2048, 512, False)
    a(f"""
    s_lshl_b32 s40, s33, 1
    s_add_u32 s40, s40, s38
    s_lshl_b32 s40, s40, 5
    s_lshl_b32 s41, s34, 2
    s_add_u32 s40, s40, s41
    s_lshl_b32 s41, s39, 1
    s_add_u32 s40, s40, s41
    s_lshl_b32 s40, s40, 10
    s_add_u32 s40, s40, {WS_QF}
    v_lshlrev_b32 v40, 4, v2
    s_mov_b32 s41, {hex(f32bits(QSCALE))}
    s_nop 4
    """)
    for i in range(16):
        a(f"v_mul_f32 v{8+i}, s41, v{8+i}")
    for i in range(8):
        a(f"v_cvt_pk_bf16_f32 v{24+i}, v{8+2*i}, v{9+2*i}")
    a(f"""
    buffer_store_dwordx4 v[24:27], v40, s[28:31], s40 offen
    buffer_store_dwordx4 v[28:31], v40, s[28:31], s40 offen offset:1024
    s_endpgm
    {name}_aux:
    v_lshlrev_b32 v40, 4, v2
    s_cmp_eq_u32 s32, 4
    s_cbranch_scc0 {name}_aux2
    s_cmp_ge_u32 s34, 4
    s_cbranch_scc1 {name}_end
    ; ---- K/V wave: rt = c%2
    s_and_b32 s38, s34, 1
    s_lshl_b32 s40, s38, 15
    v_add_u32 v52, s40, v52
    v_add_u32 v53, s40, v53
    v_add_u32 v54, s40, v54
    v_add_u32 v55, s40, v55
    v_lshlrev_b32 v51, 5, v50
    v_lshl_add_u32 v51, v48, 3, v51
    v_add_u32 v51, {L_KV}, v51
    s_lshl_b32 s40, s33, 1
    s_add_u32 s40, s40, s38              ; kt
    s_cmp_ge_u32 s34, 2
    s_cbranch_scc1 {name}_v
    """)
    kloop(51, 512, 128, False)
    a(f"""
    s_lshl_b32 s40, s40, 12
    s_add_u32 s40, s40, {WS_KV}
    s_nop 9
    """)
    for i in range(4):
        a(f"v_cvt_pk_bf16_f32 v{24+i}, v{8+2*i}, v{9+2*i}")
    a(f"""
    buffer_store_dwordx4 v[24:27], v40, s[28:31], s40 offen
    s_endpgm
    {name}_v:
    """)
    kloop(51, 512, 128, True)
    a(f"""
    s_lshl_b32 s40, s40, 12
    s_add_u32 s40, s40, {WS_KV+1024}
    s_nop 9
    """)
    for i in range(8):
        a(f"v_cvt_pk_bf16_f32 v{24+i}, v{8+2*i}, v{9+2*i}")
    a(f"""
    s_mov_b32 exec_lo, 0xffff0000
    s_mov_b32 exec_hi, 0xffff0000
    """)
    for i in range(8):
        a(f"v_mov_b32 v{24+i}, 0")
    a("s_mov_b32 exec_lo, 0x00110000")
    a("s_mov_b32 exec_hi, 0x00110000")
    for i in range(8):
        a(f"v_mov_b32 v{24+i}, 0x3f803f80")
    a(f"""
    s_mov_b64 exec, -1
    buffer_store_dwordx4 v[24:27], v40, s[28:31], s40 offen
    buffer_store_dwordx4 v[28:31], v40, s[28:31], s40 offen offset:1024
    s_endpgm
    {name}_aux2:
    s_cmp_eq_u32 s32, 7
    s_cbranch_scc1 {name}_w7
    s_sub_u32 s38, s32, 5
    s_lshl_b32 s40, s38, 15
    s_lshl_b32 s41, s34, 12
    s_add_u32 s40, s40, s41              ; rt*32768 + c*4096
    """)
    for q in range(4):
        a(f"v_add_u32 v{52+q}, s40, v{52+q}")
    for q in range(4):
        a(f"ds_read_b128 {vr(8+4*q,4)}, v{52+q}")
    a(f"""
    s_lshl_b32 s41, s33, 16
    s_add_u32 s40, s40, s41
    s_add_u32 s40, s40, {WS_XN}
    """)
    for q in range(4):
        a(f"s_waitcnt lgkmcnt({3-q})")
        a(f"buffer_store_dwordx4 {vr(8+4*q,4)}, v40, s[28:31], s40 offen offset:{q*1024}")
    a(f"""
    s_endpgm
    {name}_w7:
    s_load_dwordx4 s[4:7], s[0:1], 48
    s_load_dwordx2 s[8:9], s[0:1], 64
    s_load_dwordx2 s[10:11], s[0:1], 32
    v_mov_b32 v8, 0
    v_lshlrev_b32 v9, 2, v2
    s_lshl_b32 s40, s2, 8
    s_add_u32 s40, s40, {WS_FL}
    buffer_store_dword v8, v9, s[28:31], s40 offen
    """)
    if PF:
        a(f"""
        ; L2 warm-up of the gate/up columns this XCD uses next: rows 16i..16i+15, 896B window at 896*(x%4)
        v_mul_u32_u24 v8, 3584, v3
        v_min_u32 v9, 6, v4
        v_lshl_add_u32 v8, v9, 7, v8
        s_and_b32 s40, s2, 3
        s_mul_i32 s40, s40, 896
        s_lshr_b32 s41, s2, 3
        s_mul_i32 s41, s41, {16*3584}
        s_add_u32 s40, s40, s41
        s_add_u32 s41, s40, {8*3584}
        v_lshlrev_b32 v9, 7, v2
        s_mul_i32 s42, s2, 7168
        s_lshl_b32 s43, s2, 11
        v_and_b32 v10, 15, v2
        v_lshlrev_b32 v10, 7, v10
        s_waitcnt lgkmcnt(0)
        """)
        srd(a, 16, 4, 512 * 1792 * 2)
        srd(a, 20, 6, 512 * 1792 * 2)
        srd(a, 24, 8, 512 * 1792 * 2)
        srd(a, 44, 10, 512 * 512 * 2)
        a(f"""
        buffer_load_dword v12, v8, s[16:19], s40 offen
        buffer_load_dword v13, v8, s[20:23], s40 offen
        buffer_load_dword v14, v8, s[16:19], s41 offen
        buffer_load_dword v15, v8, s[20:23], s41 offen
        buffer_load_dword v16, v9, s[24:27], s42 offen
        buffer_load_dword v17, v10, s[44:47], s43 offen
        """)
    a(f"""
    {name}_end:
    s_endpgm
    """)
    return a, dict(vgpr=96, sgpr=48, lds=K1_LDS, grid=256, block=512)
```

```python
from asmlib import *
from layout import *
from k1 import srd, f32bits
from gemmks import *
import os

L_XN, L_SLOT, L_REC, L_KL, L_RING = 0, 64*KB, 80*KB, 96*KB, 112*KB
L_STASH = 156*KB
L_FBM = 157*KB
L_FLG = 158*KB
K2_LDS = 160*KB
OFFSET = float(os.environ.get('OFFSET', '64'))
LTHRESH = 2.0**110
KLDS = (2, 6, 10, 14)
PRE = int(os.environ.get('PRE', '6'))
NOFFN = int(os.environ.get('NOFFN', '0'))
SPACING = os.environ.get('SPACING', 'a')

A_KL, A_REC, A_WORD, A_SLOT = 0, 1, 2, 3
CA, MB, Q, KLAND, SA, SB, NM, O, KR, VR0 = 4, 6, 8, 12, 16, 32, 48, 64, 80, 128
def kreg(t):
    if t in KLDS: return KLAND
    return KR + 4 * (t - sum(1 for x in KLDS if x < t))
def vreg(t, half): return VR0 + 8 * t + 4 * half

def sample(a, q, k0, k1, sa, sb, tmp, lane16, lane, jreg):
    a(f"{MF} {vr(sa,16)}, {vr(k0,4)}, {vr(q,4)}, 0")
    a(f"{MF} {vr(sb,16)}, {vr(k1,4)}, {vr(q,4)}, 0")
    a(f"""
    s_lshl_b32 s40, s{jreg}, 11
    s_add_u32 s40, s40, {L_REC}
    v_add_u32 v{tmp+4}, s40, v{lane16}
    ds_write_b128 v{tmp+4}, {vr(q,4)}
    s_lshl_b32 s41, s{jreg}, 7
    s_add_u32 s41, s41, {L_STASH}
    v_and_b32 v{tmp+5}, 31, v{lane}
    v_lshl_add_u32 v{tmp+5}, v{tmp+5}, 2, s41
    """)
    vals = list(range(sa, sa + 16)) + list(range(sb, sb + 16))
    a(f"v_max3_f32 v{tmp}, v{vals[0]}, v{vals[1]}, v{vals[2]}")
    a(f"v_max3_f32 v{tmp+1}, v{vals[3]}, v{vals[4]}, v{vals[5]}")
    i = 6; k = 0
    while i < 32:
        a(f"v_max3_f32 v{tmp+k}, v{vals[i]}, v{vals[i+1]}, v{tmp+k}"); i += 2; k ^= 1
    a(f"""
    v_max_f32 v{tmp}, v{tmp}, v{tmp+1}
    v_mov_b32 v{tmp+1}, v{tmp}
    s_nop 1
    v_permlane32_swap_b32 v{tmp}, v{tmp+1}
    v_max_f32 v{tmp}, v{tmp}, v{tmp+1}
    v_add_f32 v{tmp}, {hex(f32bits(OFFSET))}, v{tmp}
    v_cvt_pk_bf16_f32 v{tmp}, -v{tmp}, -1.0
    ds_write_b32 v{tmp+5}, v{tmp}
    s_cmp_lt_u32 s{jreg}, 2
    s_cbranch_scc1 1f
    v_mov_b32 v{tmp}, -1
    1:
    v_mov_b32 v{tmp+1}, v{tmp}
    v_mov_b32 v{tmp+2}, v{tmp}
    v_mov_b32 v{tmp+3}, v{tmp}
    ds_write_b128 v{tmp+4}, {vr(tmp,4)} offset:1024
    """)

def att_unit(t, name, part='all', first=False, vmw=None, lbl='', extra=None):
    S = SA if t % 2 == 0 else SB
    Sn = SB if t % 2 == 0 else SA
    tn = (t + 1) % 16; tp = (t - 1) % 16
    e = [f"v_exp_f32 v{S+i}, v{S+i}" for i in range(16)]
    c = [f"v_cvt_pk_bf16_f32 v{S+i}, v{S+2*i}, v{S+2*i+1}" for i in range(8)]
    qk = f"{MF} {vr(Sn,16)}, {vr(kreg(tn),4)}, {vr(Q,4)}, {vr(NM,16)}"
    pv1 = f"{MF} {vr(O,16)}, {vr(vreg(tp,1),4)}, {vr(Sn+4,4)}, {vr(O,16)}"
    pv0 = f"{MF} {vr(O,16)}, {vr(vreg(t,0),4)}, {vr(S,4)}, {'0' if t == 0 else vr(O,16)}"
    pre = []; preqk = []; postqk = []; prepv0 = []; end = []; mid = []
    if (t + 2) in KLDS and t != 0:
        pre.append(f"ds_read_b128 {vr(KLAND,4)}, v{A_KL} offset:{KLDS.index(t+2)*1024}")
    if t == 0:
        end.append(f"ds_read_b128 {vr(KLAND,4)}, v{A_KL} offset:0")
    if t == 12:
        pre.append(f"ds_read_b32 v{MB}, v{A_WORD} offset:2048")
    w = []
    if (t + 1) in KLDS or t == 15: w.append("lgkmcnt(0)")
    if vmw is not None: w.append(f"vmcnt({vmw})")
    if w: preqk.append("s_waitcnt " + " ".join(w))
    if t == 13:
        postqk += [f"v_cmp_eq_u32 vcc, -1, v{MB}"]
        end += [f"s_cbranch_vccnz {name}_tok{lbl}", f"{name}_tokret{lbl}:"]
    if t == 14:
        postqk.append(f"ds_read_b128 {vr(Q,4)}, v{A_REC} offset:2048")
        end.append(f"v_mfma_f32_32x32x8_bf16 {vr(NM,16)}, {vr(CA,2)}, {vr(MB,2)}, 0")
    if t == 0 and not first:
        mid += [f"v_cmp_nle_f32 vcc, v{O+8}, s50"]
        prepv0 += [f"ds_write_b128 v{A_SLOT}, {vr(O,4)}", f"ds_write_b128 v{A_SLOT}, {vr(O+4,4)} offset:1024",
                   f"s_cbranch_vccnz {name}_ovf{lbl}", f"{name}_ovfret{lbl}:",
                   f"ds_write_b32 v{A_WORD}, v{O+8}",
                   f"v_xor_b32 v{A_SLOT}, s51, v{A_SLOT}",
                   f"v_add_u32 v{A_REC}, s52, v{A_REC}", f"v_add_u32 v{A_WORD}, s52, v{A_WORD}"]
    if extra: postqk += extra
    p1 = [] if (first and t == 0) else [pv1]
    if SPACING == 'a':
        head = pre + [e[0], e[1]] + p1 + [e[2], e[3], c[0], e[4], e[5], c[1]] + preqk + [qk] + postqk + \
               [e[6], e[7], c[2], e[8], e[9], c[3]] + mid + [e[10], e[11]] + prepv0
        tail = [pv0, c[4], e[12], e[13], c[5], e[14], e[15], c[6], c[7]] + end
    elif SPACING == 'b':
        head = pre + [e[0], e[1]] + p1 + [e[2], e[3], c[0], e[4], e[5], c[1], e[6]] + preqk + [qk] + postqk + \
               [e[7], c[2], e[8], e[9], c[3]] + mid + [e[10], e[11]] + prepv0
        tail = [pv0, c[4], e[12], e[13], c[5], e[14], e[15], c[6], c[7]] + end
    elif SPACING == 'c':
        head = pre + [e[0], e[1]] + p1 + [e[2], e[3], c[0], e[4], e[5], e[6]] + preqk + [qk] + postqk + \
               [c[1], e[7], c[2], e[8], c[3], e[9]] + mid + [e[10], c[4]] + prepv0
        tail = [pv0, e[11], e[12], e[13], c[5], e[14], e[15], c[6], c[7]] + end
    elif SPACING == 'd':
        head = pre + [e[0], e[1]] + p1 + [e[2], e[3], c[0], e[4], e[5], e[6]] + preqk + [qk] + postqk + \
               [c[1], e[7], c[2], e[8], c[3], e[9]] + mid + [e[10]] + prepv0
        tail = [pv0, c[4], e[11], e[12], e[13], c[5], e[14], e[15], c[6], c[7]] + end
    return {'all': head + tail, 'head': head, 'tail': tail}[part]

def gen_attention(a, name):
    T = O
    L16 = MB + 1
    a(f"""
    s_setprio 2
    v_lshlrev_b32 v{T+8}, 4, v{T+9}           ; lane16
    v_add_u32 v{L16}, {WS_KV}, v{T+8}
    s_lshl_b32 s43, s32, 16
    s_lshr_b32 s42, s2, 3
    s_lshl_b32 s42, s42, 13
    s_add_u32 s43, s43, s42
    s_lshl_b32 s45, s32, 12
    s_add_u32 s45, s45, {L_KL}
    """)
    def toff(t, s): return [f"s_add_u32 s{s}, s43, {t*4096}", f"s_and_b32 s{s}, s{s}, 0x3ffff"]
    def ldk(t):
        if t in KLDS:
            return toff(t, 46) + [f"s_add_u32 m0, s45, {KLDS.index(t)*1024}", "s_nop 0", f"buffer_load_dwordx4 v{L16}, s[28:31], s46 offen lds"]
        return toff(t, 46) + [f"buffer_load_dwordx4 {vr(kreg(t),4)}, v{L16}, s[28:31], s46 offen"]
    def ldv(t):
        return toff(t, 46) + [f"buffer_load_dwordx4 {vr(vreg(t,hf),4)}, v{L16}, s[28:31], s46 offen offset:{1024+hf*1024}" for hf in range(2)]
    groups = []
    for t in range(16):
        g = []
        if t == 0: g += ldk(2)
        if t + 1 < 16 and (t + 1) not in KLDS: g += ldk(t + 1)
        g += ldv(t)
        if (t + 3) in KLDS: g += ldk(t + 3)
        groups.append(g)
    nld = lambda g: sum(1 for x in g if x.startswith('buffer'))
    for x in ldk(0): a(x)
    for t in range(PRE):
        for x in groups[t]: a(x)
    stamp(a, 1)
    a(f"""
    v_add_u32 v{A_KL}, s45, v{T+8}
    v_add_u32 v{A_REC}, {L_REC}, v{T+8}
    s_lshl_b32 s46, s32, 2
    s_add_u32 s46, s46, {L_REC+1024}
    v_add_u32 v{A_WORD}, s46, v{T+8}
    s_lshl_b32 s46, s32, 11
    s_add_u32 s46, s46, {L_SLOT}
    v_add_u32 v{A_SLOT}, s46, v{T+8}
    v_mov_b32 v{CA}, 0x3f80
    v_mov_b32 v{CA+1}, 0
    s_mov_b32 exec_lo, 0
    v_mov_b32 v{CA}, 0
    s_mov_b32 exec_lo, -1
    s_mov_b32 s50, {hex(f32bits(LTHRESH))}
    s_mov_b32 s51, 8192
    s_mov_b32 s52, 2048
    s_mov_b32 s53, 0                          ; j
    s_barrier
    ds_read_b32 v{MB}, v{A_WORD}
    ds_read_b128 {vr(Q,4)}, v{A_REC}
    s_waitcnt lgkmcnt(1)
    v_mfma_f32_32x32x8_bf16 {vr(NM,16)}, {vr(CA,2)}, {vr(MB,2)}, 0
    s_waitcnt lgkmcnt(0) vmcnt({sum(nld(groups[t]) for t in range(PRE))})
    {MF} {vr(SA,16)}, {vr(kreg(0),4)}, {vr(Q,4)}, {vr(NM,16)}
    """)
    stamp(a, 2)
    for t in range(16):
        vmw = sum(nld(groups[u]) for u in range(t + 1, min(16, PRE + t)))
        ex = groups[PRE + t] if PRE + t < 16 else None
        for ins in att_unit(t, name, 'all', first=True, vmw=vmw, lbl='a', extra=ex): a(ins)
    for ins in att_unit(0, name, 'head', lbl='a'): a(ins)
    a(f"s_mov_b32 s53, 1")
    stamp(a, 3)
    a(".p2align 6")
    a(f"{name}_loop:")
    body = att_unit(0, name, 'tail')
    for t in range(1, 16): body += att_unit(t, name, 'all', lbl='b')
    body += att_unit(0, name, 'head', lbl='b')
    for ins in body: a(ins)
    if DIAG:
        a("s_memtime s[78:79]"); a("s_waitcnt lgkmcnt(0)"); a("s_add_u32 m0, s53, 4"); a("s_nop 0"); a("s_movreld_b32 s80, s78")
    a(f"""
    s_add_u32 s53, s53, 1
    s_cmp_lt_u32 s53, 8
    s_cbranch_scc1 {name}_loop
    """)
    stamp(a, 4); stamp(a, 15, real=True)
    stamp_flush(a, 1)
    a("s_endpgm")
    for lbl in 'ab':
        a(f"""
        {name}_tok{lbl}:
        s_cmp_eq_u32 s53, 7
        s_cbranch_scc1 {name}_tokret{lbl}
        s_sleep 1
        ds_read_b32 v{MB}, v{A_WORD} offset:2048
        s_waitcnt lgkmcnt(0)
        v_cmp_eq_u32 vcc, -1, v{MB}
        s_cbranch_vccnz {name}_tok{lbl}
        s_branch {name}_tokret{lbl}
        {name}_ovf{lbl}:
        v_and_b32 v{O+8}, 0x7fffffff, v{O+8}
        s_branch {name}_ovfret{lbl}
        """)
    return body

ACC = 128
FA, FB = 16, 40
V_L16, V_LANE, V_WSRC, V_TR, V_TR2, V_XN = 1, 2, 3, 4, 5, 6
M_REC, M_SLOT, M_ST = 64, 65, 66
M_W, M_P, M_T = 68, 72, 104

def gen_merge(a, name):
    a(f"""
    {name}_merge:
    s_cmp_ge_u32 s62, 8
    s_cbranch_scc1 {name}_mret
    ds_read_b128 {vr(M_W,4)}, v{M_REC}
    s_waitcnt lgkmcnt(0)
    s_setprio 3
    v_or3_b32 v{M_T}, v{M_W}, v{M_W+1}, v{M_W+2}
    v_or_b32 v{M_T}, v{M_T}, v{M_W+3}
    v_cmp_gt_i32 vcc, 0, v{M_T}
    s_cbranch_vccnz {name}_mret0
    """)
    for w in range(4):
        for hf in range(2):
            a(f"ds_read_b128 {vr(M_P+8*w+4*hf,4)}, v{M_SLOT} offset:{w*2048+hf*1024}")
    a(f"""
    ds_read_b32 v{M_T+4}, v{M_ST} offset:256
    v_add_f32 v{M_T}, v{M_W}, v{M_W+1}
    v_add_f32 v{M_T+1}, v{M_W+2}, v{M_W+3}
    v_add_f32 v{M_T}, v{M_T}, v{M_T+1}
    v_rcp_f32 v{M_T}, v{M_T}
    s_waitcnt lgkmcnt(5)
    """)
    for i in range(4):
        a(f"v_pk_add_f32 {vr(M_P+2*i,2)}, {vr(M_P+2*i,2)}, {vr(M_P+8+2*i,2)}")
    a("s_waitcnt lgkmcnt(0)")
    a(f"""
    v_mov_b32 v{M_T+5}, v{M_T+4}
    v_mov_b32 v{M_T+6}, v{M_T+4}
    v_mov_b32 v{M_T+7}, v{M_T+4}
    s_cmp_ge_u32 s62, 6
    s_cbranch_scc1 1f
    ds_write_b128 v{M_REC}, {vr(M_T+4,4)} offset:4096
    1:
    """)
    for i in range(4):
        a(f"v_pk_add_f32 {vr(M_P+16+2*i,2)}, {vr(M_P+16+2*i,2)}, {vr(M_P+24+2*i,2)}")
    for i in range(4):
        a(f"v_pk_add_f32 {vr(M_P+2*i,2)}, {vr(M_P+2*i,2)}, {vr(M_P+16+2*i,2)}")
    for i in range(4):
        a(f"v_pk_mul_f32 {vr(M_P+2*i,2)}, {vr(M_P+2*i,2)}, {vr(M_T,2)} op_sel_hi:[1,0]")
    for i in range(4):
        a(f"v_cvt_pk_bf16_f32 v{M_P+8+i}, v{M_P+2*i}, v{M_P+2*i+1}")
    a(f"""
    s_and_b32 s64, s62, 1
    s_lshl_b32 s64, s64, 15
    s_lshr_b32 s65, s62, 1
    s_lshl_b32 s65, s65, 10
    s_add_u32 s64, s64, s65
    s_add_u32 s64, s64, s63
    buffer_store_dwordx4 {vr(M_P+8,4)}, v{V_L16}, s[28:31], s64 offen
    v_add_u32 v{M_REC}, 2048, v{M_REC}
    v_xor_b32 v{M_SLOT}, 8192, v{M_SLOT}
    v_add_u32 v{M_ST}, 128, v{M_ST}
    s_add_u32 s62, s62, 1
    {name}_mret0:
    s_setprio 0
    {name}_mret:
    s_setpc_b64 s[60:61]
    """)

def lds_arrive(a, word, rtn=False):
    a(f"""
    v_mov_b32 v8, {L_FLG + 4*word}
    v_mov_b32 v9, 1
    s_mov_b64 exec, 1
    {'ds_add_rtn_u32 v9, v8, v9' if rtn else 'ds_add_u32 v8, v9'}
    s_mov_b64 exec, -1
    """)

def lds_spin(a, name, n, call=True):
    a(f"""
    2:
    ds_read_b32 v9, v8
    s_waitcnt lgkmcnt(0)
    s_setprio 3
    v_readfirstlane_b32 s40, v9
    s_cmp_ge_u32 s40, {n}
    s_cbranch_scc1 3f
    {f's_call_b64 s[60:61], {name}_merge' if call else ''}
    s_sleep 2
    s_branch 2b
    3:
    """)

def gemm1(a, name, wide, hook):
    nct = 2 if wide else 1
    NS = 3 if wide else 4
    slotb = 4096 if wide else 2048
    ndma = 4 if wide else 2
    def dma(ks):
        sl = ks % NS
        for m in range(2):
            srdn = 16 if m == 0 else 20
            for p in range(2 if wide else 1):
                a(f"s_add_u32 m0, s47, {sl*slotb + m*(slotb//2) + p*1024}")
                a(f"s_add_u32 s48, s46, {(ks*16 + p*8)*3584}")
                a(f"buffer_load_dwordx4 v{V_WSRC}, s[{srdn}:{srdn+3}], s48 offen lds")
    def reads(ks):
        F = FA if ks % 2 == 0 else FB
        sl = ks % NS
        for m in range(2):
            for ct in range(nct):
                for jh in range(2):
                    r = F + (m * nct + ct) * 4 + 2 * jh
                    ad = V_TR if ct == 0 else V_TR2
                    off = sl * slotb + m * (slotb // 2) + jh * (512 if wide else 256)
                    a(f"ds_read_b64_tr_b16 {vr(r,2)}, v{ad} offset:{off}")
        for rt in range(2):
            a(f"ds_read_b128 {vr(F+16+4*rt,4)}, v{V_XN} offset:{rt*32768+ks*1024}")
    def mf(ks):
        F = FA if ks % 2 == 0 else FB
        for m in range(2):
            for ct in range(nct):
                for rt in range(2):
                    d = ACC + 16 * ((m * nct + ct) * 2 + rt)
                    a(f"{MF} {vr(d,16)}, {vr(F+(m*nct+ct)*4,4)}, {vr(F+16+4*rt,4)}, {'0' if ks == 0 else vr(d,16)}")
    for ks in range(NS): dma(ks)
    a(f"s_waitcnt vmcnt({NS*ndma})")
    lds_arrive(a, 9)
    lds_spin(a, name, 4, call=False)
    a("s_setprio 0")
    a(f"s_waitcnt vmcnt({(NS-1)*ndma})")
    stamp(a, 2)
    reads(0)
    a("s_waitcnt lgkmcnt(0)")
    dma(NS)
    for ks in range(32):
        if ks + 1 < 32:
            nout = min(32, ks + NS + 1) - (ks + 2)
            a(f"s_waitcnt vmcnt({nout*ndma})")
            reads(ks + 1)
        mf(ks)
        if ks + 1 < 32:
            a("s_waitcnt lgkmcnt(0)")
            if ks + 1 + NS < 32: dma(ks + 1 + NS)
        if hook and ks % 2 == 1: a(f"s_call_b64 s[60:61], {name}_merge")
    stamp(a, 3)
    a(f"""
    s_lshr_b32 s40, s46, 5
    s_mul_i32 s41, s38, {2*112}
    s_add_u32 s40, s40, s41
    s_lshl_b32 s40, s40, 10
    s_add_u32 s40, s40, {WS_H}
    s_add_u32 s41, s40, {112*1024}
    s_setprio 3
    s_nop 7
    """)
    for ct in range(nct):
        for rt in range(2):
            g = ACC + 16 * (ct * 2 + rt); u = ACC + 16 * ((nct + ct) * 2 + rt)
            for i in range(16): a(f"v_max_f32 v{g+i}, 0, v{g+i}")
            for i in range(8): a(f"v_pk_mul_f32 {vr(g+2*i,2)}, {vr(g+2*i,2)}, {vr(u+2*i,2)}")
            for i in range(8): a(f"v_cvt_pk_bf16_f32 v{u+i}, v{g+2*i}, v{g+2*i+1}")
            for hf in range(2):
                a(f"buffer_store_dwordx4 {vr(u+4*hf,4)}, v{V_L16}, s[28:31], s{40+rt} offen offset:{(2*ct+hf)*1024} sc1")

def gen_ffn(a, name):
    a(f"""
    s_setprio 3
    s_sub_u32 s35, s32, 4
    v_mov_b32 v{V_LANE}, v{O+9}
    v_lshlrev_b32 v{V_L16}, 4, v{V_LANE}
    s_lshl_b32 s42, s35, 16
    s_lshr_b32 s43, s2, 3
    s_lshl_b32 s43, s43, 13
    s_add_u32 s42, s42, s43
    s_and_b32 s42, s42, 0x3ffff
    s_add_u32 s42, s42, {WS_KV}
    s_add_u32 s43, s42, 4096
    buffer_load_dwordx4 v[16:19], v{V_L16}, s[28:31], s36 offen
    buffer_load_dwordx4 v[20:23], v{V_L16}, s[28:31], s42 offen
    buffer_load_dwordx4 v[24:27], v{V_L16}, s[28:31], s43 offen
    buffer_load_dwordx4 v[28:31], v{V_L16}, s[28:31], s36 offen offset:2048
    s_lshl_b32 s43, s38, 16
    s_lshl_b32 s44, s35, 10
    s_add_u32 s43, s43, s44
    s_add_u32 s43, s43, {WS_XN}
    """)
    XE = int(os.environ.get('XE', '8'))
    def xdma(i):
        off = (i // 2) * 4096 + (i % 2) * 32768
        a(f"s_add_u32 m0, s44, {L_XN + off}")
        a(f"s_add_u32 s45, s43, {off}")
        a(f"buffer_load_dwordx4 v{V_L16}, s[28:31], s45 offen lds")
    for i in range(XE): xdma(i)
    srd(a, 16, 4, 512 * 1792 * 2)
    srd(a, 20, 6, 512 * 1792 * 2)
    srd(a, 24, 8, 1792 * 512 * 2)
    a(f"""
    v_mov_b32 v8, 0
    v_lshlrev_b32 v9, 2, v{V_LANE}
    v_add_u32 v9, {L_FLG}, v9
    ds_write_b32 v9, v8
    s_mov_b32 s62, 8
    s_waitcnt vmcnt({XE+1})
    """)
    stamp(a, 1)
    sample(a, 16, 20, 24, 64, 80, 8, V_L16, V_LANE, 35)
    a(f"s_waitcnt vmcnt({XE})")
    sample(a, 28, 20, 24, 64, 80, 8, V_L16, V_LANE, 32)
    a(f"""
    s_waitcnt lgkmcnt(0)
    s_barrier
    """)
    for i in range(XE, 16): xdma(i)
    a(f"""
    s_mul_i32 s46, s39, 448
    s_and_b32 s40, s39, 1
    s_lshl_b32 s41, s35, 7               ; 128*fw
    s_mul_i32 s47, s35, 12288
    s_add_u32 s47, s47, {L_RING}
    v_lshrrev_b32 v8, 5, v{V_LANE}       ; h
    v_bfe_u32 v9, v{V_LANE}, 2, 2        ; r4
    v_and_b32 v10, 3, v{V_LANE}          ; c4
    v_bfe_u32 v11, v{V_LANE}, 4, 1       ; mh
    v_lshlrev_b32 v12, 5, v11
    v_lshl_add_u32 v12, v10, 3, v12      ; 32mh + 8c4
    v_add_u32 v{V_XN}, {L_XN}, v{V_L16}
    s_cmp_eq_u32 s35, 3
    s_cbranch_scc1 {name}_fd
    s_lshl_b32 s40, s40, 6
    s_add_u32 s46, s46, s40
    s_add_u32 s46, s46, s41
    v_lshrrev_b32 v13, 3, v{V_LANE}      ; row 0..7
    v_and_b32 v14, 2, v13
    v_lshlrev_b32 v14, 1, v14
    v_and_b32 v15, 7, v{V_LANE}
    v_xor_b32 v14, v14, v15
    v_lshlrev_b32 v14, 4, v14
    v_mul_u32_u24 v13, 3584, v13
    v_add_u32 v{V_WSRC}, v13, v14
    v_lshl_add_u32 v13, v8, 3, v9        ; 8h + r4
    v_lshl_add_u32 v13, v13, 7, v12
    v_add_u32 v13, s47, v13
    v_lshrrev_b32 v14, 1, v9
    v_lshlrev_b32 v14, 6, v14            ; swz*64
    v_add_u32 v{V_TR}, v13, v14
    v_xor_b32 v14, 64, v14
    v_add_u32 v{V_TR2}, v13, v14
    """)
    if NOFFN: a(f"s_branch {name}_drain")
    else: gemm1(a, name, True, False)
    a(f"""
    s_branch {name}_g2
    {name}_fd:
    s_xor_b32 s40, s40, 1
    s_mul_i32 s40, s40, 384
    s_add_u32 s46, s46, s40
    v_lshrrev_b32 v13, 2, v{V_LANE}      ; row 0..15
    v_mul_u32_u24 v13, 3584, v13
    v_lshl_add_u32 v{V_WSRC}, v10, 4, v13
    v_lshl_add_u32 v13, v8, 3, v9
    v_lshl_add_u32 v13, v13, 6, v12
    v_add_u32 v{V_TR}, s47, v13
    v_add_u32 v{M_REC}, {L_REC+1024}, v{V_L16}
    v_add_u32 v{M_SLOT}, {L_SLOT}, v{V_L16}
    v_and_b32 v{M_ST}, 31, v{V_LANE}
    v_lshlrev_b32 v{M_ST}, 2, v{M_ST}
    v_add_u32 v{M_ST}, {L_STASH}, v{M_ST}
    s_mov_b32 s62, 0
    s_lshl_b32 s63, s33, 16
    s_lshl_b32 s40, s34, 12
    s_add_u32 s63, s63, s40
    s_add_u32 s63, s63, {WS_OF}
    """)
    if NOFFN: a(f"s_branch {name}_drain")
    else: gemm1(a, name, False, True)
    a(f"""
    {name}_g2:
    s_lshl_b32 s47, s35, 14
    """)
    ks_addr(a, V_LANE, V_WSRC, V_TR, 47, 10)
    a("s_waitcnt vmcnt(0)")
    stamp(a, 5)
    lds_arrive(a, 8, rtn=True)
    a(f"""
    s_waitcnt lgkmcnt(0)
    v_readfirstlane_b32 s40, v9
    s_cmp_eq_u32 s40, 3
    s_cbranch_scc0 4f
    s_lshl_b32 s40, s38, 8
    s_add_u32 s40, s40, {WS_FL}
    v_mov_b32 v9, 1
    v_mov_b32 v10, 0
    s_mov_b64 exec, 1
    buffer_atomic_add v9, v10, s[28:31], s40 offen
    s_mov_b64 exec, -1
    4:
    """)
    lds_spin(a, name, 4)
    a(f"""
    s_mul_i32 s46, s35, {448*1024}
    s_lshl_b32 s40, s34, 7
    s_add_u32 s46, s46, s40
    s_mul_i32 s49, s33, {2*112*1024}
    s_mul_i32 s40, s35, {28*1024}
    s_add_u32 s49, s49, s40
    s_add_u32 s49, s49, {WS_H}
    """)
    ks = KS(a, 28, 8, ACC, 192, FA, FB, V_WSRC, V_TR, V_L16, 24, 28, 46, 49, 112 * 1024, 47, 48, bflags='sc1')
    for k in range(8): ks.dma(k)
    stamp(a, 6)
    a(f"""
    s_lshl_b32 s41, s33, 8
    s_add_u32 s41, s41, {WS_FL}
    v_mov_b32 v10, 0
    5:
    buffer_load_dword v9, v10, s[28:31], s41 offen sc1
    s_waitcnt vmcnt(0)
    s_setprio 3
    v_readfirstlane_b32 s40, v9
    s_cmp_ge_u32 s40, 8
    s_cbranch_scc1 6f
    s_call_b64 s[60:61], {name}_merge
    s_sleep 4
    s_branch 5b
    6:
    s_setprio 0
    """)
    stamp(a, 7)
    for k in range(8): ks.ldb(k)
    ks.loop(hook=lambda k: a(f"s_call_b64 s[60:61], {name}_merge") if k % 2 == 1 else None)
    stamp(a, 8)
    a("s_setprio 3")
    ks_write_partial(a, V_LANE, ACC, 47, 10)
    ks_reduce_addr(a, V_LANE, 35, L_XN, 16, 40)
    a("s_waitcnt lgkmcnt(0)")
    lds_arrive(a, 10)
    lds_spin(a, name, 4)
    ks_reduce(a, 16, ACC)
    for i in range(8): a(f"v_cvt_pk_bf16_f32 v{24+i}, v{ACC+2*i}, v{ACC+2*i+1}")
    a(f"""
    s_lshl_b32 s46, s33, 3
    s_add_u32 s46, s46, s34
    s_lshl_b32 s46, s46, 13
    s_lshl_b32 s40, s35, 11
    s_add_u32 s46, s46, s40
    s_add_u32 s46, s46, {WS_G}
    buffer_store_dwordx4 v[24:27], v{V_L16}, s[28:31], s46 offen
    buffer_store_dwordx4 v[28:31], v{V_L16}, s[28:31], s46 offen offset:1024
    """)
    stamp(a, 9)
    a(f"""
    {name}_drain:
    s_call_b64 s[60:61], {name}_merge
    s_cmp_ge_u32 s62, 8
    s_cbranch_scc1 {name}_dend
    s_sleep 2
    s_branch {name}_drain
    {name}_dend:
    """)
    stamp(a, 4); stamp(a, 15, real=True)
    stamp_flush(a, 1)
    a("s_endpgm")
    gen_merge(a, name)

def gen_k2(name):
    a = Asm()
    a(f"""
    s_cmp_ge_u32 s2, 256
    s_cbranch_scc1 {name}_end
    s_load_dwordx4 s[4:7], s[0:1], 48
    s_load_dwordx2 s[8:9], s[0:1], 64
    s_load_dwordx2 s[12:13], s[0:1], 88
    v_lshrrev_b32 v1, 6, v0
    v_and_b32 v{O+9}, 63, v0             ; lane
    v_readfirstlane_b32 s32, v1
    s_and_b32 s33, s2, 7
    s_lshl_b32 s33, s33, 2
    s_lshr_b32 s35, s2, 6
    s_add_u32 s33, s33, s35              ; rb2 = 4x + i/8
    s_bfe_u32 s34, s2, 0x30003           ; c2 = i%8
    s_bfe_u32 s38, s2, 0x10002           ; x/4
    s_lshl_b32 s38, s38, 4
    s_lshr_b32 s35, s2, 4
    s_add_u32 s38, s38, s35              ; rb1 = 16*(x/4) + i/2
    s_and_b32 s39, s2, 3
    s_lshl_b32 s39, s39, 1
    s_bfe_u32 s35, s2, 0x10003
    s_add_u32 s39, s39, s35              ; c1 = 2*(x%4) + i%2
    ; Q frag offset for q-tile j = wave%4: ((2rb + j%2)*32 + 4c + j/2) KB
    s_lshl_b32 s36, s33, 16
    s_and_b32 s37, s32, 1
    s_lshl_b32 s37, s37, 15
    s_add_u32 s36, s36, s37
    s_lshl_b32 s37, s34, 12
    s_add_u32 s36, s36, s37
    s_bfe_u32 s37, s32, 0x10001
    s_lshl_b32 s37, s37, 10
    s_add_u32 s36, s36, s37
    s_add_u32 s36, s36, {WS_QF}
    s_waitcnt lgkmcnt(0)
    """)
    srd(a, 28, 12, WS_END)
    stamp(a, 0); stamp(a, 14, real=True)
    a(f"""
    s_cmp_ge_u32 s32, 4
    s_cbranch_scc1 {name}_ffn
    """)
    body = gen_attention(a, name)
    a(f"{name}_ffn:")
    gen_ffn(a, name)
    a(f"""
    {name}_end:
    s_endpgm
    """)
    bl = ['    ' + x if not x.endswith(':') else x for x in body]
    _, k = fix_hazards(bl + bl, tag='attloop')
    print('attention loop wrap nops needed:', k)
    return a, dict(vgpr=256, sgpr=100, lds=K2_LDS, grid=256, block=512)
```

```python
from asmlib import *
from layout import *
from k1 import srd, f32bits
from gemmks import *

def gen_k3(name):
    a = Asm()
    a(f"""
    s_cmp_ge_u32 s2, 256
    s_cbranch_scc1 {name}_end
    s_load_dwordx2 s[4:5], s[0:1], 0
    s_load_dwordx2 s[6:7], s[0:1], 32
    s_load_dwordx2 s[8:9], s[0:1], 72
    s_load_dwordx2 s[12:13], s[0:1], 88
    v_lshrrev_b32 v1, 6, v0
    v_and_b32 v2, 63, v0
    v_readfirstlane_b32 s32, v1
    s_and_b32 s33, s2, 7
    s_lshl_b32 s33, s33, 2
    s_lshr_b32 s35, s2, 6
    s_add_u32 s33, s33, s35              ; rb
    s_bfe_u32 s34, s2, 0x30003           ; c
    v_lshlrev_b32 v1, 4, v2              ; lane16
    s_lshl_b32 s40, s32, 14
    s_lshl_b32 s41, s32, 17
    s_lshl_b32 s42, s34, 7
    s_add_u32 s41, s41, s42
    s_lshl_b32 s43, s33, 16
    s_lshl_b32 s44, s32, 13
    s_add_u32 s43, s43, s44
    s_add_u32 s43, s43, {WS_OF}
    """)
    ks_addr(a, 2, 3, 4, 40, 8)
    a("s_waitcnt lgkmcnt(0)")
    srd(a, 28, 12, WS_END)
    srd(a, 20, 6, 512 * 512 * 2)
    stamp(a, 0); stamp(a, 14, real=True)
    ks = KS(a, 8, 8, 128, 64, 16, 24, 3, 4, 1, 20, 28, 41, 43, 32768, 40, 45)
    for k in range(8):
        ks.dma(k); ks.ldb(k)
    srd(a, 16, 4, 2048 * 512 * 2)
    srd(a, 24, 8, 2048 * 512 * 2)
    a(f"""
    s_lshl_b32 s46, s33, 3
    s_add_u32 s46, s46, s34
    s_lshl_b32 s46, s46, 13
    s_lshl_b32 s47, s32, 11
    s_add_u32 s46, s46, s47
    s_add_u32 s46, s46, {WS_G}
    buffer_load_dwordx4 v[32:35], v1, s[28:31], s46 offen
    buffer_load_dwordx4 v[36:39], v1, s[28:31], s46 offen offset:1024
    v_lshrrev_b32 v6, 2, v2
    v_lshlrev_b32 v6, 10, v6
    v_and_b32 v7, 3, v2
    v_lshl_add_u32 v6, v7, 5, v6
    s_lshl_b32 s46, s33, 16
    s_lshl_b32 s47, s32, 14
    s_add_u32 s46, s46, s47
    s_add_u32 s46, s46, s42
    buffer_load_dwordx4 v[40:43], v6, s[16:19], s46 offen
    buffer_load_dwordx4 v[44:47], v6, s[16:19], s46 offen offset:16
    """)
    ks.other(4)
    ks.loop()
    stamp(a, 1)
    a("s_nop 7")
    ks_write_partial(a, 2, 128, 40, 8)
    ks_reduce_addr(a, 2, 32, 0, 16, 45)
    a("s_waitcnt vmcnt(0)")
    a(f"s_mov_b32 s47, {hex(f32bits(-1.4426950408889634))}")
    for i in range(8):
        a(f"v_lshlrev_b32 v{48+2*i}, 16, v{32+i}")
        a(f"v_and_b32 v{49+2*i}, 0xffff0000, v{32+i}")
    for i in range(16): a(f"v_mul_f32 v{64+i}, s47, v{48+i}")
    for i in range(16): a(f"v_exp_f32 v{64+i}, v{64+i}")
    for i in range(16): a(f"v_add_f32 v{64+i}, 1.0, v{64+i}")
    for i in range(16): a(f"v_rcp_f32 v{64+i}, v{64+i}")
    for i in range(16): a(f"v_mul_f32 v{48+i}, v{48+i}, v{64+i}")
    for i in range(8):
        a(f"v_lshlrev_b32 v{64+2*i}, 16, v{40+i}")
        a(f"v_and_b32 v{65+2*i}, 0xffff0000, v{40+i}")
    a("s_waitcnt lgkmcnt(0)")
    a("s_barrier")
    ks_reduce(a, 16, 128)
    for i in range(16): a(f"v_fma_f32 v{128+i}, v{128+i}, v{48+i}, v{64+i}")
    for i in range(8): a(f"v_cvt_pk_bf16_f32 v{32+i}, v{128+2*i}, v{129+2*i}")
    a(f"""
    buffer_store_dwordx4 v[32:35], v6, s[24:27], s46 offen
    buffer_store_dwordx4 v[36:39], v6, s[24:27], s46 offen offset:16
    """)
    stamp(a, 4); stamp(a, 15, real=True)
    stamp_flush(a, 2)
    a(f"""
    {name}_end:
    s_endpgm
    """)
    return a, dict(vgpr=192, sgpr=100, lds=64 * KB, grid=256, block=256)
```

```python
KB = 1024
WS_XN = 0
WS_QF = 2048 * KB
WS_KV = 4096 * KB
WS_FL = WS_KV + 256 * KB
WS_OF = 4608 * KB
WS_G  = WS_OF + 2048 * KB
WS_H  = WS_G + 4096 * KB
WS_DBG = WS_H + 64 * 112 * KB
WS_END = WS_DBG + 512 * KB
WS_SIZE = 268435456
QSCALE = 0.25 * 1.4426950408889634

import os
DIAG = bool(int(os.environ.get('DIAG', '0')))
def stamp(a, idx, real=False):
    if not DIAG: return
    a(f"s_mem{'real' if real else ''}time s[78:79]")
    a("s_waitcnt lgkmcnt(0)")
    a(f"s_mov_b32 s{80+idx}, s78")
def stamp_flush(a, kidx, wave_sgpr=32, srd=28, n=16, v0=0, v1=1):
    if not DIAG: return
    a(f"s_lshl_b32 s78, s2, 3")
    a(f"s_add_u32 s78, s78, s{wave_sgpr}")
    a(f"s_lshl_b32 s78, s78, 6")
    a(f"s_add_u32 s78, s78, {WS_DBG + kidx * 128 * KB}")
    a("s_mov_b64 exec, 1")
    a("s_nop 7"); a("s_nop 7")
    a(f"v_mov_b32 v{v0}, 0")
    for i in range(n):
        a(f"v_mov_b32 v{v1}, s{80+i}")
        a(f"buffer_store_dword v{v1}, v{v0}, s[{srd}:{srd+3}], s78 offen offset:{4*i}")
        a("s_waitcnt vmcnt(0)")
```
